```python
import torch

def _softmax(x, axis=-1):
    return torch.softmax(x, dim=axis)
def _gelu(x):
    return torch.nn.functional.gelu(x, approximate="tanh")
def _silu(x):
    return torch.nn.functional.silu(x)
def _sigmoid(x):
    return torch.sigmoid(x)
def _layernorm(x, axis=-1, eps=1e-5):
    m = x.mean(dim=axis, keepdim=True)
    v = x.var(dim=axis, keepdim=True, unbiased=False)
    return (x - m) / torch.sqrt(v + eps)
def _scatter_add(tgt, idx, src, axis=0):
    return tgt.clone().index_add_(axis, idx, src)
def _segment_sum(src, seg, n):
    out = torch.zeros((n,) + src.shape[1:], dtype=src.dtype)
    return out.index_add_(0, seg, src)
def _pad(x, pw):
    flat = tuple(v for pair in reversed(pw) for v in pair)
    return torch.nn.functional.pad(x, flat)

kernel_name = 'interleave_layers__linear_attn_block__glu_gated_bilinear__prompt'

def setup_inputs():

    _w = (lambda a: (lambda t: t.to(torch.bfloat16) if t.is_floating_point() else t)(torch.as_tensor(a)))
    def _A_setup():
        B, S, D = 1, 2048, 1024
        return {
            "x": _w((lambda *s: torch.randn(*s, dtype=torch.bfloat16) * 0.05)(B, S, D)),
            "wqkv": _w((lambda *s: torch.randn(*s, dtype=torch.bfloat16) * 0.05)(D, 3 * D)),
            "wo": _w((lambda *s: torch.randn(*s, dtype=torch.bfloat16) * 0.05)(D, D)),
        }
    _A_in = _A_setup()

    def _B_setup():
        B, S, D, F = 1, 2048, 1024, 3584
        return {
            "x": _w((lambda *s: torch.randn(*s, dtype=torch.bfloat16) * 0.05)(B, S, D)),
            "w_gate": _w((lambda *s: torch.randn(*s, dtype=torch.bfloat16) * 0.8)(D, F) * (D ** -0.5)),
            "w_up": _w((lambda *s: torch.randn(*s, dtype=torch.bfloat16) * 0.8)(D, F) * (D ** -0.5)),
            "w_down": _w((lambda *s: torch.randn(*s, dtype=torch.bfloat16) * 0.8)(F, D) * (F ** -0.5)),
        }
    _B_in = _B_setup()

    return {
        "A_x": _A_in["x"],
        "A_wqkv": _A_in["wqkv"],
        "A_wo": _A_in["wo"],
        "B_x": _B_in["x"],
        "B_w_gate": _B_in["w_gate"],
        "B_w_up": _B_in["w_up"],
        "B_w_down": _B_in["w_down"],
    }

def reference(A_x, A_wqkv, A_wo, B_x, B_w_gate, B_w_up, B_w_down):
    def _A_ref(x, wqkv, wo):
        B, S, D = x.shape
        H = 32; Dh = D // H
        qkv = (lambda x, *d: x.permute(*d))((x @ wqkv).reshape(B, S, 3, H, Dh), 2, 0, 3, 1, 4)
        q, k, v = qkv[0], qkv[1], qkv[2]
        phi = lambda t: torch.where(t > 0, t + 1, torch.exp(t)) + 1e-6
        pq, pk = phi(q), phi(k)
        kv = torch.einsum("bhsd,bhse->bhde", pk, v)
        z = torch.einsum("bhsd->bhd", pk)
        num = torch.einsum("bhqd,bhde->bhqe", pq, kv)
        den = torch.einsum("bhqd,bhd->bhq", pq, z)[..., None] + 1e-6
        o = num / den
        return (lambda x, *d: x.permute(*d))(o, 0, 2, 1, 3).reshape(B, S, D) @ wo

    def _B_ref(x, w_gate, w_up, w_down):
        g = torch.einsum("bsd,df->bsf", x, w_gate)
        u = torch.einsum("bsd,df->bsf", x, w_up)
        h = g * u
        return torch.einsum("bsf,fd->bsd", h, w_down)

    x = A_x
    x = x + _A_ref(_layernorm(x, axis=-1), A_wqkv, A_wo)
    x = x + _B_ref(_layernorm(x, axis=-1), B_w_gate, B_w_up, B_w_down)
    x = x + _A_ref(_layernorm(x, axis=-1), A_wqkv, A_wo)
    x = x + _B_ref(_layernorm(x, axis=-1), B_w_gate, B_w_up, B_w_down)
    return x
```

```python
import sys, os, math

NAME = "interleave_layers__linear_attn_block__glu_gated_bilinear__prompt"

WS_XT = 0x0000000
WS_PQ = 0x0400000
WS_X1 = 0x0800000
WS_H = 0x0C00000
WS_STA = 0x1A00000
WS_STB = 0x1A40000
WS_CS = 0x1A80000
WS_KV = 0x1AC0000
WS_SIZE = 0x2000000
KV_BYTES = 32 * 17 * 256
NCS = 10240

LOG2E = 0x3FB8AA3B
EPS6 = 0x358637BD
EPS5 = 0x3727C5AC


def f32bits(x):
    import struct
    return struct.unpack("<I", struct.pack("<f", x))[0]


assert f32bits(1e-6) == EPS6 and f32bits(1e-5) == EPS5 and f32bits(math.log2(math.e)) == LOG2E


class KB:
    def __init__(self):
        self.lines = []
        self.vm = []
        self.lg = []
        self.marks = []
        self.uid = 0

    def e(self, s):
        self.lines.append("    " + s)

    def c(self, s):
        self.lines.append("    ; " + s)

    def label(self, s):
        self.lines.append(s + ":")

    def vmop(self, s, tag=None):
        self.e(s)
        self.vm.append(tag)

    def lgop(self, s, tag=None):
        self.e(s)
        self.lg.append(tag)

    def need(self, vm=(), lg=()):
        parts = []
        idx = max([i for i, t in enumerate(self.vm) if t in vm], default=-1)
        if idx >= 0:
            n = min(len(self.vm) - idx - 1, 63)
            parts.append("vmcnt(%d)" % n)
            self.vm = self.vm[len(self.vm) - n:] if n else []
        idx = max([i for i, t in enumerate(self.lg) if t in lg], default=-1)
        if idx >= 0:
            n = min(len(self.lg) - idx - 1, 15)
            parts.append("lgkmcnt(%d)" % n)
            self.lg = self.lg[len(self.lg) - n:] if n else []
        if parts:
            self.e("s_waitcnt " + " ".join(parts))

    def wait_all_lg(self):
        self.e("s_waitcnt lgkmcnt(0)")
        self.lg = []

    def wait_all_vm(self):
        self.e("s_waitcnt vmcnt(0)")
        self.vm = []

    def mark(self):
        self.marks.append(len(self.lines))

    def roll(self, sreg, lname):
        m = self.marks
        blocks = [self.lines[m[i]:m[i + 1]] for i in range(len(m) - 1)]
        best = (0, 1)
        i = 0
        while i < len(blocks):
            j = i
            while j + 1 < len(blocks) and blocks[j + 1] == blocks[i]:
                j += 1
            if j - i + 1 > best[1]:
                best = (i, j - i + 1)
            i = j + 1
        i, n = best
        if n >= 2:
            head = self.lines[:m[i]]
            tail = self.lines[m[i + n]:]
            body = blocks[i]
            self.lines = head + ["    s_mov_b32 %s, %d" % (sreg, n), ".p2align 3", lname + ":"] + body + [
                "    s_sub_u32 %s, %s, 1" % (sreg, sreg),
                "    s_cmp_lg_u32 %s, 0" % sreg,
                "    s_cbranch_scc1 %s" % lname] + tail
        self.marks = []
        return len(blocks), best


def vr(b, n=1):
    return "v%d" % b if n == 1 else "v[%d:%d]" % (b, b + n - 1)


def ar(b, n=1):
    return "a%d" % b if n == 1 else "a[%d:%d]" % (b, b + n - 1)


def sr(b, n=1):
    return "s%d" % b if n == 1 else "s[%d:%d]" % (b, b + n - 1)


S_WS = 8
S_W = 12
S_O = 16
S_WAVE = 20
S_MB = 21
S_NB = 22
S_A = 23
S_WL = 24
S_LOOP = 25
S_T0, S_T1, S_T2, S_T3 = 26, 27, 28, 29
S_FLAG = 30
S_D = 32
S_PTR = 40


def load_kernargs(k):
    k.e("s_load_dwordx16 s[40:55], s[0:1], 0")
    k.e("s_load_dwordx4 s[56:59], s[0:1], 64")


P_X, P_WQKV, P_WO, P_BX, P_WG, P_WU, P_WD, P_OUT, P_DBG, P_WS = [40 + 2 * i for i in range(10)]


def make_srd(k, srd, ptr, nbytes):
    k.e("s_mov_b32 s%d, s%d" % (srd, ptr))
    k.e("s_and_b32 s%d, s%d, 0xffff" % (srd + 1, ptr + 1))
    k.e("s_mov_b32 s%d, 0x%x" % (srd + 2, nbytes))
    k.e("s_mov_b32 s%d, 0x20000" % (srd + 3))


def srd_advance(k, srd, nbytes):
    k.e("s_add_u32 s%d, s%d, %s" % (srd, srd, nbytes))
    k.e("s_addc_u32 s%d, s%d, 0" % (srd + 1, srd + 1))
    k.e("s_sub_u32 s%d, s%d, %s" % (srd + 2, srd + 2, nbytes))


def wave_id(k, vtid, vlane):
    k.e("v_mov_b32 %s, v0" % vr(vtid))
    k.e("v_lshrrev_b32 %s, 6, v0" % vr(vlane))
    k.e("s_nop 1")
    k.e("v_readfirstlane_b32 s%d, %s" % (S_WAVE, vr(vlane)))
    k.e("v_and_b32 %s, 63, v0" % vr(vlane))
    k.e("s_nop 3")


def cross_half_sum(k, a, tmp):
    k.e("v_mov_b32 %s, %s" % (vr(tmp), vr(a)))
    k.e("s_nop 1")
    k.e("v_permlane32_swap_b32 %s, %s" % (vr(a), vr(tmp)))
    k.e("s_nop 1")
    k.e("v_add_f32 %s, %s, %s" % (vr(a), vr(a), vr(tmp)))


def stats_load(k, dst, voff, soff, tag):
    for i in range(8):
        k.vmop("buffer_load_dwordx2 %s, %s, %s, %s offen offset:%d" % (
            vr(dst + 2 * i, 2), vr(voff), sr(S_WS, 4), soff, i * 256), tag)


def stats_finish(k, src, mean, rstd, t0, t1):
    k.e("v_add_f32 %s, %s, %s" % (vr(mean), vr(src), vr(src + 2)))
    for i in range(2, 8):
        k.e("v_add_f32 %s, %s, %s" % (vr(mean), vr(mean), vr(src + 2 * i)))
    cross_half_sum(k, mean, t0)
    k.e("v_mul_f32 %s, 0x%x, %s" % (vr(mean), f32bits(1.0 / 1024), vr(mean)))
    k.e("v_add_f32 %s, %s, %s" % (vr(rstd), vr(src + 1), vr(src + 3)))
    for i in range(2, 8):
        k.e("v_add_f32 %s, %s, %s" % (vr(rstd), vr(rstd), vr(src + 2 * i + 1)))
    k.e("v_mov_b32 %s, 0" % vr(t1))
    for i in range(8):
        k.e("v_mul_f32 %s, 0x%x, %s" % (vr(t0), f32bits(1.0 / 64), vr(src + 2 * i)))
        k.e("v_sub_f32 %s, %s, %s" % (vr(t0), vr(t0), vr(mean)))
        k.e("v_fmac_f32 %s, %s, %s" % (vr(t1), vr(t0), vr(t0)))
    k.e("v_fmamk_f32 %s, %s, 0x%x, %s" % (vr(rstd), vr(t1), f32bits(64.0), vr(rstd)))
    cross_half_sum(k, rstd, t0)
    k.e("v_mov_b32 %s, 0x%x" % (vr(t0), EPS5))
    k.e("v_fmamk_f32 %s, %s, 0x%x, %s" % (vr(rstd), vr(rstd), f32bits(1.0 / 1024), vr(t0)))
    k.e("v_rsq_f32 %s, %s" % (vr(rstd), vr(rstd)))
    k.e("s_nop 1")


def stats_produce(k, pk, f, s, m2, t0, voff, soff):
    assert m2 == s + 1 and s % 2 == 0
    for i in range(16):
        k.e("v_lshlrev_b32 %s, 16, %s" % (vr(f + 2 * i), vr(pk + i)))
        k.e("v_and_b32 %s, 0xffff0000, %s" % (vr(f + 2 * i + 1), vr(pk + i)))
    k.e("v_pk_add_f32 %s, %s, %s" % (vr(s, 2), vr(f, 2), vr(f + 2, 2)))
    for i in range(2, 16):
        k.e("v_pk_add_f32 %s, %s, %s" % (vr(s, 2), vr(s, 2), vr(f + 2 * i, 2)))
    k.e("v_add_f32 %s, %s, %s" % (vr(s), vr(s), vr(m2)))
    cross_half_sum(k, s, t0)
    k.e("v_mul_f32 %s, 0x%x, %s" % (vr(t0), f32bits(1.0 / 64), vr(s)))
    k.e("v_mov_b32 %s, 0" % vr(m2))
    for i in range(32):
        k.e("v_sub_f32 %s, %s, %s" % (vr(f + i), vr(f + i), vr(t0)))
    for i in range(32):
        k.e("v_fmac_f32 %s, %s, %s" % (vr(m2), vr(f + i), vr(f + i)))
    cross_half_sum(k, m2, t0)
    k.vmop("buffer_store_dwordx2 %s, %s, %s, %s offen" % (vr(s, 2), vr(voff), sr(S_WS, 4), soff))


def descriptor(name, nvgpr, accum, nsgpr=96):
    return """.section .rodata,"a"
.p2align 6
.amdhsa_kernel %s
  .amdhsa_next_free_vgpr %d
  .amdhsa_next_free_sgpr %d
  .amdhsa_accum_offset %d
  .amdhsa_group_segment_fixed_size 0
  .amdhsa_kernarg_size 80
  .amdhsa_user_sgpr_count 2
  .amdhsa_user_sgpr_kernarg_segment_ptr 1
  .amdhsa_system_sgpr_workgroup_id_x 1
  .amdhsa_float_denorm_mode_32 3
.end_amdhsa_kernel
.text
""" % (name, nvgpr, nsgpr, accum)


def header(name):
    return ".globl %s\n.p2align 8\n.type %s,@function\n%s:\n" % (name, name, name)


K0_X = 256
K0_C = 320
K0_GRID = K0_X + K0_C


def gen_k0():
    k = KB()
    VT, VL = 60, 61
    k.e("s_cmp_ge_u32 s2, %d" % K0_GRID)
    k.e("s_cbranch_scc1 L_k0_end")
    load_kernargs(k)
    wave_id(k, VT, VL)
    k.e("s_waitcnt lgkmcnt(0)")
    make_srd(k, S_WS, P_WS, WS_SIZE)
    k.e("s_cmp_ge_u32 s2, %d" % K0_X)
    k.e("s_cbranch_scc1 L_k0_cs")
    make_srd(k, S_O, P_X, 2048 * 1024 * 2)
    k.e("s_lshl_b32 s%d, s2, 2" % S_T0)
    k.e("s_add_u32 s%d, s%d, s%d" % (S_T0, S_T0, S_WAVE))
    k.e("s_lshr_b32 s%d, s%d, 4" % (S_MB, S_T0))
    k.e("s_and_b32 s%d, s%d, 15" % (S_NB, S_T0))
    k.e("s_lshl_b32 s%d, s%d, 16" % (S_T1, S_MB))
    k.e("s_lshl_b32 s%d, s%d, 7" % (S_T2, S_NB))
    k.e("s_add_u32 s%d, s%d, s%d" % (S_T1, S_T1, S_T2))
    k.e("v_and_b32 v1, 31, %s" % vr(VL))
    k.e("v_lshlrev_b32 v2, 11, v1")
    k.e("v_lshrrev_b32 v3, 5, %s" % vr(VL))
    k.e("v_lshl_add_u32 v2, v3, 4, v2")
    for j in range(4):
        k.vmop("buffer_load_dwordx4 %s, v2, %s, s%d offen offset:%d" % (vr(4 + 4 * j, 4), sr(S_O, 4), S_T1, 32 * j), "x")
    k.e("s_cmp_ge_u32 s2, 34")
    k.e("s_cbranch_scc1 L_k0_nz")
    for i in range(4):
        k.e("v_mov_b32 v%d, 0" % (56 + i))
    k.e("s_lshl_b32 s%d, s2, 12" % S_T3)
    k.e("s_add_u32 s%d, s%d, 0x%x" % (S_T3, S_T3, WS_KV))
    k.e("v_lshlrev_b32 v3, 4, %s" % vr(VT))
    k.e("buffer_store_dwordx4 v[56:59], v3, %s, s%d offen" % (sr(S_WS, 4), S_T3))
    k.label("L_k0_nz")
    k.e("s_lshl_b32 s%d, s%d, 12" % (S_T1, S_T0))
    k.e("s_add_u32 s%d, s%d, 0x%x" % (S_T1, S_T1, WS_XT))
    k.e("s_lshl_b32 s%d, s%d, 8" % (S_T2, S_T0))
    k.e("s_add_u32 s%d, s%d, 0x%x" % (S_T2, S_T2, WS_STA))
    k.e("v_lshlrev_b32 v2, 4, %s" % vr(VL))
    k.e("v_lshlrev_b32 v3, 3, v1")
    k.e("s_waitcnt vmcnt(0)")
    k.vm = []
    for j in range(4):
        b = 4 + 4 * j
        k.e("v_permlane32_swap_b32 v%d, v%d" % (b, b + 2))
        k.e("v_permlane32_swap_b32 v%d, v%d" % (b + 1, b + 3))
    k.e("s_nop 1")
    for j in range(4):
        k.vmop("buffer_store_dwordx4 %s, v2, %s, s%d offen offset:%d" % (vr(4 + 4 * j, 4), sr(S_WS, 4), S_T1, 1024 * j))
    stats_produce(k, 4, 20, 52, 53, 54, 3, "s%d" % S_T2)
    k.e("s_endpgm")
    k.label("L_k0_cs")
    k.e("s_sub_u32 s%d, s2, %d" % (S_T0, K0_X))
    k.e("s_lshr_b32 s%d, s%d, 2" % (S_NB, S_T0))
    k.e("s_and_b32 s%d, s%d, 3" % (S_MB, S_T0))
    k.e("s_cmp_lt_u32 s%d, 24" % S_NB)
    k.e("s_cbranch_scc0 L_k0_c1")
    make_srd(k, S_W, P_WQKV, 1024 * 3072 * 2)
    k.e("s_mov_b32 s%d, 6144" % S_T1)
    k.e("s_mov_b32 s%d, s%d" % (S_T2, S_NB))
    k.e("s_branch L_k0_c3")
    k.label("L_k0_c1")
    k.e("s_cmp_lt_u32 s%d, 52" % S_NB)
    k.e("s_cbranch_scc0 L_k0_c2")
    make_srd(k, S_W, P_WG, 1024 * 3584 * 2)
    k.e("s_mov_b32 s%d, 7168" % S_T1)
    k.e("s_sub_u32 s%d, s%d, 24" % (S_T2, S_NB))
    k.e("s_branch L_k0_c3")
    k.label("L_k0_c2")
    make_srd(k, S_W, P_WU, 1024 * 3584 * 2)
    k.e("s_mov_b32 s%d, 7168" % S_T1)
    k.e("s_sub_u32 s%d, s%d, 52" % (S_T2, S_NB))
    k.label("L_k0_c3")
    k.e("v_lshrrev_b32 v1, 4, %s" % vr(VT))
    k.e("v_mul_lo_u32 v1, v1, s%d" % S_T1)
    k.e("v_and_b32 v2, 15, %s" % vr(VT))
    k.e("v_lshl_add_u32 v1, v2, 4, v1")
    k.e("s_lshl_b32 s%d, s%d, 8" % (S_T3, S_MB))
    k.e("s_mul_i32 s%d, s%d, s%d" % (S_T3, S_T3, S_T1))
    k.e("s_lshl_b32 s%d, s%d, 8" % (S_T2, S_T2))
    k.e("s_add_u32 s%d, s%d, s%d" % (S_T3, S_T3, S_T2))
    k.e("s_lshl_b32 s%d, s%d, 4" % (S_T1, S_T1))
    for i in range(8):
        k.e("v_mov_b32 v%d, 0" % (40 + i))
    for half in range(2):
        for i in range(8):
            k.vmop("buffer_load_dwordx4 %s, v1, %s, s%d offen" % (vr(64 + 32 * half + 4 * i, 4), sr(S_W, 4), S_T3), ("c", half, i))
            k.e("s_add_u32 s%d, s%d, s%d" % (S_T3, S_T3, S_T1))
    for half in range(2):
        for i in range(8):
            k.need(vm=[("c", half, i)])
            for d in range(4):
                src = 64 + 32 * half + 4 * i + d
                k.e("v_lshlrev_b32 v48, 16, v%d" % src)
                k.e("v_and_b32 v49, 0xffff0000, v%d" % src)
                k.e("v_pk_add_f32 %s, %s, v[48:49]" % (vr(40 + 2 * d, 2), vr(40 + 2 * d, 2)))
    k.e("v_lshlrev_b32 v1, 5, %s" % vr(VT))
    k.e("ds_write_b128 v1, v[40:43]")
    k.e("ds_write_b128 v1, v[44:47] offset:16")
    k.e("s_waitcnt lgkmcnt(0)")
    k.e("s_barrier")
    k.e("v_and_b32 v2, 127, %s" % vr(VT))
    k.e("v_lshlrev_b32 v2, 2, v2")
    for i in range(16):
        k.e("ds_read_b32 v%d, v2 offset:%d" % (4 + i, 512 * i))
    k.e("s_waitcnt lgkmcnt(0)")
    for i in range(1, 16):
        k.e("v_add_f32 v4, v4, v%d" % (4 + i))
    k.e("s_mul_i32 s%d, s%d, %d" % (S_T0, S_MB, NCS * 4))
    k.e("s_lshl_b32 s%d, s%d, 9" % (S_T1, S_NB))
    k.e("s_add_u32 s%d, s%d, s%d" % (S_T0, S_T0, S_T1))
    k.e("s_add_u32 s%d, s%d, 0x%x" % (S_T0, S_T0, WS_CS))
    k.e("buffer_store_dword v4, v2, %s, s%d offen" % (sr(S_WS, 4), S_T0))
    k.label("L_k0_end")
    k.e("s_endpgm")
    return header("k0_kernel") + "\n".join(k.lines) + "\n" + descriptor("k0_kernel", 128, 128), 8192


class Gemm:
    def __init__(self, k, MT, NT, S, SPS, NS, WD, R, DPW, stage_gbytes, orient, rd_addr, dma, va, lname):
        self.__dict__.update(locals())
        self.WREG = 0
        self.AREG = NT * 4 * WD
        self.nagpr = self.AREG + MT * 4 * R
        assert self.nagpr <= 256
        assert WD <= SPS and R % 4 == 0 and S % SPS == 0
        self.NU = S // SPS
        self.BODY = (NS * SPS) * R // math.gcd(NS * SPS, R)
        self.BODY = self.BODY * WD // math.gcd(self.BODY, WD)

    def wreg(self, s, t):
        return self.WREG + ((s % self.WD) * self.NT + t) * 4

    def areg(self, s, mt):
        return self.AREG + ((s % self.R) * self.MT + mt) * 4

    def acc(self, mt, t):
        return (mt * self.NT + t) * 16

    def a_load(self, s, mt):
        k = self.k
        if not 0 <= s < self.S:
            return
        k.vmop("buffer_load_dwordx4 %s, %s, %s, s%d offen offset:%d" % (
            ar(self.areg(s, mt), 4), vr(self.va[mt]), sr(S_WS, 4), S_A, (s % 4) * 1024), ("A", s, mt))
        if s % 4 == 3 and mt == self.MT - 1:
            k.e("s_add_u32 s%d, s%d, 4096" % (S_A, S_A))

    def w_read(self, s, t):
        k = self.k
        if not 0 <= s < self.S:
            return
        u = s // self.SPS
        for j in range(2):
            v, off = self.rd_addr(u % self.NS, s % self.SPS, t, j)
            k.lgop("ds_read_b64_tr_b16 %s, %s offset:%d" % (ar(self.wreg(s, t) + 2 * j, 2), vr(v), off), ("W", s, t))

    def run(self, mid_prologue=None):
        k = self.k
        MT, NT, S, SPS, NS, WD, R, DPW = self.MT, self.NT, self.S, self.SPS, self.NS, self.WD, self.R, self.DPW
        pre = max(R, (NS - 2) * SPS + WD)
        pre = (pre + SPS - 1) // SPS * SPS
        first_barrier_step = -WD
        for s in range(-pre, S):
            if s == first_barrier_step and mid_prologue:
                mid_prologue()
            if s >= 0 and s % self.BODY == 0:
                k.mark()
            if (s + WD) % SPS == 0:
                u = (s + WD) // SPS
                if 0 <= u < self.NU:
                    k.need(vm=[("D", u, i) for i in range(DPW)])
                    k.e("s_barrier")
            ub = (s + WD) // SPS
            pos = (s + WD) % SPS
            ud = ub + NS - 2
            dl = [i for i in range(DPW) if i * SPS // DPW == pos] if 0 <= ud < self.NU else []
            nslots = MT * NT
            fill = {i: [] for i in range(nslots)}
            for n, i in enumerate(dl):
                p = (1 + n * nslots // max(len(dl), 1)) % nslots if nslots > 2 else n % nslots
                fill[p].append(("D", ud, i))
            for mt in range(MT):
                p = min(nslots - 1, (2 * mt + 0) if nslots > 2 else 0)
                fill[p].append(("A", s - 1 + R, mt))
            idx = 0
            for t in range(NT):
                for mt in range(MT):
                    premfma = [f for f in fill[idx] if f[0] == "D"]
                    if premfma:
                        self.dma(premfma[0][1], premfma[0][2], 0)
                    if s >= 0:
                        k.need(vm=[("A", s, mt)], lg=[("W", s, t)])
                        a = vr(self.acc(mt, t), 16)
                        w = ar(self.wreg(s, t), 4)
                        x = ar(self.areg(s, mt), 4)
                        if self.orient(t) == "T":
                            k.e("v_mfma_f32_32x32x16_bf16 %s, %s, %s, %s" % (a, w, x, a))
                        else:
                            k.e("v_mfma_f32_32x32x16_bf16 %s, %s, %s, %s" % (a, x, w, a))
                    elif premfma:
                        k.e("s_nop 0")
                    for n, f in enumerate(premfma):
                        if n:
                            self.dma(f[1], f[2], 0)
                            k.e("s_nop 0")
                        self.dma(f[1], f[2], 1)
                        if f[2] == DPW - 1:
                            srd_advance(k, S_W, "0x%x" % self.stage_gbytes)
                    for f in fill[idx]:
                        if f[0] == "A":
                            self.a_load(f[1], f[2])
                    if mt == MT - 1:
                        self.w_read(s + WD, t)
                    idx += 1
        k.mark()
        nb, best = k.roll("s%d" % S_LOOP, self.lname)
        sys.stderr.write("%s: %d blocks, rolled %s, agprs %d\n" % (self.lname, nb, best, self.nagpr))


def tile_map(k, mbits_x, nm, nn, xm, xn):
    assert xm * xn == 32 and (nm // xm) * (nn // xn) == 8
    gm = nm // xm
    lgm = gm.bit_length() - 1
    lxm = xm.bit_length() - 1
    lxn = xn.bit_length() - 1
    k.e("s_and_b32 s%d, s2, 7" % S_T1)
    k.e("s_lshr_b32 s%d, s2, 3" % S_T2)
    k.e("s_and_b32 s%d, s%d, %d" % (S_T0, S_T1, gm - 1))
    k.e("s_lshl_b32 s%d, s%d, %d" % (S_T0, S_T0, lxm))
    k.e("s_and_b32 s%d, s%d, %d" % (S_T3, S_T2, xm - 1))
    k.e("s_add_u32 s%d, s%d, s%d" % (S_T0, S_T0, S_T3))
    k.e("s_lshr_b32 s%d, s%d, %d" % (S_NB, S_T1, lgm))
    k.e("s_lshl_b32 s%d, s%d, %d" % (S_NB, S_NB, lxn))
    k.e("s_lshr_b32 s%d, s%d, %d" % (S_T3, S_T2, lxm))
    k.e("s_add_u32 s%d, s%d, s%d" % (S_NB, S_NB, S_T3))


def lane_consts_128(k, VL, v_rd, nwin, win_bytes, v_dma, pitch, t0, t1, t2):
    L = vr(VL)
    k.e("v_bfe_u32 %s, %s, 2, 2" % (vr(t0), L))
    k.e("v_lshrrev_b32 %s, 5, %s" % (vr(t1), L))
    k.e("v_lshl_add_u32 %s, %s, 2, %s" % (vr(t0), vr(t1), vr(t0)))
    k.e("v_lshlrev_b32 %s, 7, %s" % (vr(t0), vr(t0)))
    k.e("v_bfe_u32 %s, %s, 4, 1" % (vr(t1), L))
    k.e("v_lshl_add_u32 %s, %s, 5, %s" % (vr(t0), vr(t1), vr(t0)))
    k.e("v_and_b32 %s, 3, %s" % (vr(t1), L))
    k.e("v_lshl_add_u32 %s, %s, 3, %s" % (vr(t0), vr(t1), vr(t0)))
    k.e("v_bfe_u32 %s, %s, 3, 1" % (vr(t1), L))
    k.e("v_lshlrev_b32 %s, 6, %s" % (vr(t1), vr(t1)))
    k.e("v_xor_b32 %s, 64, %s" % (vr(t2), vr(t1)))
    for w in range(nwin):
        k.e("v_add_u32 %s, %s, %s" % (vr(v_rd[w][0]), vr(t0), vr(t1)))
        k.e("v_add_u32 %s, %s, %s" % (vr(v_rd[w][1]), vr(t0), vr(t2)))
        if w:
            k.e("v_add_u32 %s, 0x%x, %s" % (vr(v_rd[w][0]), w * win_bytes, vr(v_rd[w][0])))
            k.e("v_add_u32 %s, 0x%x, %s" % (vr(v_rd[w][1]), w * win_bytes, vr(v_rd[w][1])))
    k.e("v_lshrrev_b32 %s, 3, %s" % (vr(t0), L))
    k.e("s_mov_b32 s%d, %d" % (S_T3, pitch))
    k.e("v_mul_lo_u32 %s, %s, s%d" % (vr(t0), vr(t0), S_T3))
    k.e("v_bfe_u32 %s, %s, 4, 1" % (vr(t1), L))
    k.e("v_lshlrev_b32 %s, 2, %s" % (vr(t1), vr(t1)))
    k.e("v_and_b32 %s, 7, %s" % (vr(t2), L))
    k.e("v_xor_b32 %s, %s, %s" % (vr(t1), vr(t1), vr(t2)))
    k.e("v_lshl_add_u32 %s, %s, 4, %s" % (vr(v_dma), vr(t1), vr(t0)))


def phi_pair(k, x, t):
    k.e("v_min_f32 %s, 0, %s" % (vr(t), vr(x)))
    k.e("v_min_f32 %s, 0, %s" % (vr(t + 1), vr(x + 1)))
    k.e("v_pk_mul_f32 %s, %s, %s" % (vr(t, 2), vr(t, 2), sr(S_D + 6, 2)))
    k.e("v_max_f32 %s, 0, %s" % (vr(x), vr(x)))
    k.e("v_exp_f32 %s, %s" % (vr(t), vr(t)))
    k.e("v_exp_f32 %s, %s" % (vr(t + 1), vr(t + 1)))
    k.e("v_max_f32 %s, 0, %s" % (vr(x + 1), vr(x + 1)))
    k.e("v_pk_add_f32 %s, %s, %s" % (vr(x, 2), vr(x, 2), vr(t, 2)))
    k.e("v_pk_add_f32 %s, %s, %s" % (vr(x, 2), vr(x, 2), sr(S_PTR, 2)))


def gen_k1(P):
    k = KB()
    NS, WD, R = P.get("k1_ns", 4), P.get("k1_wd", 2), P.get("k1_r", 16)
    STG = 24576
    L_CS = NS * STG
    L_ST = L_CS + 1024
    L_RED = L_ST + 1024
    LDS = L_RED + 32768
    VT, VL, VA, VDMA = 96, 97, 98, 99
    nwin = (NS + 1) // 2
    VRD = [[100 + 2 * w, 101 + 2 * w] for w in range(nwin)]
    VMEAN, VRSTD = 108, 109
    T = 112
    k.e("s_cmp_ge_u32 s2, 256")
    k.e("s_cbranch_scc1 L_k1_end")
    load_kernargs(k)
    wave_id(k, VT, VL)
    tile_map(k, 0, 16, 16, 8, 4)
    k.e("s_lshl_b32 s%d, s%d, 2" % (S_MB, S_T0))
    k.e("s_add_u32 s%d, s%d, s%d" % (S_MB, S_MB, S_WAVE))
    lane_consts_128(k, VL, VRD, nwin, 2 * STG, VDMA, 6144, T, T + 1, T + 2)
    k.e("v_lshlrev_b32 %s, 4, %s" % (vr(VA), vr(VL)))
    k.e("s_waitcnt lgkmcnt(0)")
    make_srd(k, S_WS, P_WS, WS_SIZE)
    make_srd(k, S_W, P_WQKV, 1024 * 3072 * 2)
    k.e("s_lshl_b32 s%d, s%d, 7" % (S_T0, S_NB))
    k.e("s_mul_i32 s%d, s%d, %d" % (S_T1, S_WAVE, 16 * 6144))
    k.e("s_add_u32 s%d, s%d, s%d" % (S_T0, S_T0, S_T1))
    srd_advance(k, S_W, "s%d" % S_T0)
    k.e("s_lshl_b32 s%d, s%d, 11" % (S_WL, S_WAVE))
    for i in range(6):
        k.e("s_mov_b32 s%d, %d" % (S_D + i, (i >> 1) * 2048 + (i & 1) * 8 * 6144))
    k.e("s_lshl_b32 s%d, s%d, 16" % (S_A, S_MB))
    k.e("s_add_u32 s%d, s%d, 0x%x" % (S_A, S_A, WS_XT))
    k.e("v_and_b32 %s, 31, %s" % (vr(T), vr(VL)))
    k.e("v_lshlrev_b32 %s, 3, %s" % (vr(T), vr(T)))
    k.e("v_lshrrev_b32 %s, 5, %s" % (vr(T + 1), vr(VL)))
    k.e("v_lshl_add_u32 %s, %s, 11, %s" % (vr(T), vr(T + 1), vr(T)))
    k.e("s_lshl_b32 s%d, s%d, 12" % (S_T0, S_MB))
    k.e("s_add_u32 s%d, s%d, 0x%x" % (S_T0, S_T0, WS_STA))
    stats_load(k, T + 8, T, "s%d" % S_T0, "st")
    k.e("v_min_u32 %s, 191, %s" % (vr(T + 2), vr(VT)))
    k.e("v_lshrrev_b32 %s, 6, %s" % (vr(T + 3), vr(T + 2)))
    k.e("v_lshlrev_b32 %s, 12, %s" % (vr(T + 3), vr(T + 3)))
    k.e("v_and_b32 %s, 63, %s" % (vr(T + 4), vr(T + 2)))
    k.e("v_lshl_add_u32 %s, %s, 2, %s" % (vr(T + 3), vr(T + 4), vr(T + 3)))
    k.e("s_lshl_b32 s%d, s%d, 8" % (S_T0, S_NB))
    k.e("s_add_u32 s%d, s%d, 0x%x" % (S_T0, S_T0, WS_CS))
    for i in range(4):
        k.vmop("buffer_load_dword %s, %s, %s, s%d offen" % (vr(T + 24 + i), vr(T + 3), sr(S_WS, 4), S_T0), "cs")
        if i < 3:
            k.e("s_add_u32 s%d, s%d, %d" % (S_T0, S_T0, NCS * 4))

    def mid():
        for i in range(96):
            k.e("v_mov_b32 v%d, 0" % i)
        k.need(vm=["st", "cs"])
        stats_finish(k, T + 8, VMEAN, VRSTD, T + 4, T + 5)
        k.e("v_mul_f32 %s, %s, %s" % (vr(VMEAN), vr(VMEAN), vr(VRSTD)))
        k.e("v_sub_f32 %s, 0, %s" % (vr(VMEAN), vr(VMEAN)))
        k.e("v_and_b32 %s, 31, %s" % (vr(T), vr(VL)))
        k.e("v_lshlrev_b32 %s, 2, %s" % (vr(T), vr(T)))
        k.e("s_lshl_b32 s%d, s%d, 8" % (S_T0, S_WAVE))
        k.e("s_add_u32 s%d, s%d, 0x%x" % (S_T0, S_T0, L_ST))
        k.e("v_add_u32 %s, s%d, %s" % (vr(T), S_T0, vr(T)))
        k.e("ds_write_b32 %s, %s" % (vr(T), vr(VRSTD)))
        k.e("ds_write_b32 %s, %s offset:128" % (vr(T), vr(VMEAN)))
        k.e("v_add_f32 %s, %s, %s" % (vr(T + 24), vr(T + 24), vr(T + 25)))
        k.e("v_add_f32 %s, %s, %s" % (vr(T + 26), vr(T + 26), vr(T + 27)))
        k.e("v_add_f32 %s, %s, %s" % (vr(T + 24), vr(T + 24), vr(T + 26)))
        k.e("v_lshlrev_b32 %s, 2, %s" % (vr(T + 2), vr(T + 2)))
        k.e("v_add_u32 %s, 0x%x, %s" % (vr(T + 2), L_CS, vr(T + 2)))
        k.e("ds_write_b32 %s, %s" % (vr(T + 2), vr(T + 24)))
        k.e("s_waitcnt lgkmcnt(0)")

    def rd_addr(slot, q, t, j):
        return VRD[slot // 2][t & 1], (slot % 2) * STG + (t >> 1) * 8192 + (16 * q + 8 * j) * 128

    def dma(u, i, phase):
        if phase == 0:
            k.e("s_add_u32 m0, s%d, 0x%x" % (S_WL, (u % NS) * STG + (i >> 1) * 8192 + (i & 1) * 1024))
        else:
            k.vmop("buffer_load_dwordx4 %s, %s, s%d offen lds" % (vr(VDMA), sr(S_W, 4), S_D + i), ("D", u, i))

    g = Gemm(k, 1, 6, 64, 4, NS, WD, R, 6, 64 * 6144, lambda t: "T" if t < 2 else "N", rd_addr, dma, [VA], "L_k1_loop")
    g.run(mid)

    k.c("epilogue")
    k.e("s_mov_b32 s%d, 0x%x" % (S_D + 6, LOG2E))
    k.e("s_mov_b32 s%d, 0x%x" % (S_D + 7, LOG2E))
    k.e("s_mov_b32 s%d, 0x%x" % (S_PTR, EPS6))
    k.e("s_mov_b32 s%d, 0x%x" % (S_PTR + 1, EPS6))
    RA, RB, CSV, TMP = T, T + 16, T + 32, T + 40
    PKA, PKB, KVD = T + 48, T + 56, T + 64
    ZS = T + 44
    k.e("v_lshrrev_b32 %s, 5, %s" % (vr(TMP), vr(VL)))
    k.e("v_lshlrev_b32 %s, 4, %s" % (vr(TMP), vr(TMP)))
    k.e("s_lshl_b32 s%d, s%d, 8" % (S_T0, S_WAVE))
    k.e("s_add_u32 s%d, s%d, 0x%x" % (S_T0, S_T0, L_ST))
    k.e("v_add_u32 %s, s%d, %s" % (vr(TMP + 1), S_T0, vr(TMP)))
    for j in range(4):
        k.lgop("ds_read_b128 %s, %s offset:%d" % (vr(RA + 4 * j, 4), vr(TMP + 1), 32 * j), "ra")
        k.lgop("ds_read_b128 %s, %s offset:%d" % (vr(RB + 4 * j, 4), vr(TMP + 1), 128 + 32 * j), "ra")
    k.e("v_and_b32 %s, 31, %s" % (vr(TMP + 2), vr(VL)))
    k.e("v_lshlrev_b32 %s, 2, %s" % (vr(TMP + 2), vr(TMP + 2)))
    k.e("v_add_u32 %s, 0x%x, %s" % (vr(TMP + 2), L_CS, vr(TMP + 2)))
    for t in range(2, 6):
        k.lgop("ds_read_b32 %s, %s offset:%d" % (vr(CSV + 2 * (t - 2)), vr(TMP + 2), t * 128), "ra")
    k.e("v_add_u32 %s, 0x%x, %s" % (vr(VDMA), L_CS, vr(TMP)))
    k.need(lg=["ra"])
    k.e("s_nop 7")
    for h in range(2):
        for which in (0, 1):
            t = 2 + 2 * which + h
            a = t * 16
            cs = CSV + 2 * (t - 2)
            pk = PKA if which == 0 else PKB
            for r in range(0, 16, 2):
                k.e("v_pk_mul_f32 %s, %s, %s op_sel_hi:[1,0]" % (vr(TMP, 2), vr(RB + r, 2), vr(cs, 2)))
                k.e("v_pk_fma_f32 %s, %s, %s, %s" % (vr(a + r, 2), vr(RA + r, 2), vr(a + r, 2), vr(TMP, 2)))
                if which == 0:
                    phi_pair(k, a + r, TMP + 2)
                k.e("v_cvt_pk_bf16_f32 %s, %s, %s" % (vr(pk + r // 2), vr(a + r), vr(a + r + 1)))
            if which == 0:
                for r in range(2, 16, 2):
                    k.e("v_pk_add_f32 %s, %s, %s" % (vr(a, 2), vr(a, 2), vr(a + r, 2)))
                k.e("v_add_f32 %s, %s, %s" % (vr(ZS + h), vr(a), vr(a + 1)))
        k.e("s_nop 1")
        d = vr(KVD + 16 * h, 16)
        k.e("v_mfma_f32_32x32x16_bf16 %s, %s, %s, 0" % (d, vr(PKA, 4), vr(PKB, 4)))
        k.e("v_mfma_f32_32x32x16_bf16 %s, %s, %s, %s" % (d, vr(PKA + 4, 4), vr(PKB + 4, 4), d))
        k.e("s_nop 3")
    k.e("v_permlane32_swap_b32 %s, %s" % (vr(ZS), vr(ZS + 1)))
    k.e("s_nop 1")
    k.e("v_add_f32 %s, %s, %s" % (vr(ZS), vr(ZS), vr(ZS + 1)))
    k.e("v_lshrrev_b32 %s, 5, %s" % (vr(TMP), vr(VL)))
    k.e("v_mul_u32_u24 %s, %d, %s" % (vr(TMP), 17 * 256, vr(TMP)))
    k.e("v_and_b32 %s, 31, %s" % (vr(TMP + 1), vr(VL)))
    k.e("v_lshl_add_u32 %s, %s, 2, %s" % (vr(TMP), vr(TMP + 1), vr(TMP)))
    k.e("s_mul_i32 s%d, s%d, %d" % (S_T0, S_NB, 2 * 17 * 256))
    k.e("s_add_u32 s%d, s%d, 0x%x" % (S_T0, S_T0, WS_KV))
    k.e("s_add_u32 s%d, s%d, %d" % (S_T1, S_T0, 16 * 256))
    k.vmop("buffer_atomic_add_f32 %s, %s, %s, s%d offen" % (vr(ZS), vr(TMP), sr(S_WS, 4), S_T1))
    k.e("s_lshl_b32 s%d, s%d, 13" % (S_T1, S_WAVE))
    k.e("s_add_u32 s%d, s%d, 0x%x" % (S_T1, S_T1, L_RED))
    k.e("v_add_u32 %s, s%d, %s" % (vr(TMP), S_T1, vr(VA)))
    k.e("s_nop 7")
    for i in range(8):
        k.lgop("ds_write_b128 %s, %s offset:%d" % (vr(TMP), vr(KVD + 4 * i, 4), 1024 * i))
    k.wait_all_lg()
    k.e("s_barrier")
    k.e("s_lshl_b32 s%d, s%d, 11" % (S_T1, S_WAVE))
    k.e("s_add_u32 s%d, s%d, 0x%x" % (S_T1, S_T1, L_RED))
    k.e("v_add_u32 %s, s%d, %s" % (vr(TMP), S_T1, vr(VA)))
    for w in range(4):
        for c in range(2):
            k.lgop("ds_read_b128 %s, %s offset:%d" % (vr(KVD + 8 * w + 4 * c, 4), vr(TMP), 8192 * w + 1024 * c), "red")
    CQ = 32
    for t in range(2):
        for j in range(4):
            k.lgop("ds_read_b128 %s, %s offset:%d" % (vr(CQ + 16 * t + 4 * j, 4), vr(VDMA), t * 128 + 32 * j), "cq")
    k.e("s_lshr_b32 s%d, s%d, 1" % (S_T1, S_WAVE))
    k.e("s_mul_i32 s%d, s%d, %d" % (S_T1, S_T1, 17 * 256))
    k.e("s_and_b32 s%d, s%d, 1" % (S_T2, S_WAVE))
    k.e("s_lshl_b32 s%d, s%d, 11" % (S_T2, S_T2))
    k.e("s_add_u32 s%d, s%d, s%d" % (S_T0, S_T0, S_T1))
    k.e("s_add_u32 s%d, s%d, s%d" % (S_T0, S_T0, S_T2))
    k.e("v_lshlrev_b32 %s, 2, %s" % (vr(TMP + 1), vr(VL)))
    k.need(lg=["red"])
    for i in range(0, 8, 2):
        k.e("v_pk_add_f32 %s, %s, %s" % (vr(KVD + i, 2), vr(KVD + i, 2), vr(KVD + 8 + i, 2)))
        k.e("v_pk_add_f32 %s, %s, %s" % (vr(KVD + 16 + i, 2), vr(KVD + 16 + i, 2), vr(KVD + 24 + i, 2)))
        k.e("v_pk_add_f32 %s, %s, %s" % (vr(KVD + i, 2), vr(KVD + i, 2), vr(KVD + 16 + i, 2)))
    for i in range(8):
        k.vmop("buffer_atomic_add_f32 %s, %s, %s, s%d offen offset:%d" % (vr(KVD + i), vr(TMP + 1), sr(S_WS, 4), S_T0, 256 * i))
    k.need(lg=["cq"])
    k.e("s_lshl_b32 s%d, s%d, 16" % (S_T0, S_MB))
    k.e("s_lshl_b32 s%d, s%d, 12" % (S_T1, S_NB))
    k.e("s_add_u32 s%d, s%d, s%d" % (S_T0, S_T0, S_T1))
    k.e("s_add_u32 s%d, s%d, 0x%x" % (S_T0, S_T0, WS_PQ))
    PQK = 64
    for t in range(2):
        a = 16 * t
        for r in range(0, 16, 2):
            k.e("v_pk_mul_f32 %s, %s, %s op_sel_hi:[1,0]" % (vr(TMP, 2), vr(CQ + a + r, 2), vr(VMEAN, 2)))
            k.e("v_pk_fma_f32 %s, %s, %s, %s op_sel:[0,1,0] op_sel_hi:[1,1,1]" % (vr(a + r, 2), vr(a + r, 2), vr(VMEAN, 2), vr(TMP, 2)))
            phi_pair(k, a + r, TMP + 2)
            k.e("v_cvt_pk_bf16_f32 %s, %s, %s" % (vr(PQK + 8 * t + r // 2), vr(a + r), vr(a + r + 1)))
            if r % 8 == 6:
                f = r // 8
                k.vmop("buffer_store_dwordx4 %s, %s, %s, s%d offen offset:%d" % (
                    vr(PQK + 8 * t + 4 * f, 4), vr(VA), sr(S_WS, 4), S_T0, (2 * t + f) * 1024))
    k.label("L_k1_end")
    k.e("s_endpgm")
    return header("k1_kernel") + "\n".join(k.lines) + "\n" + descriptor("k1_kernel", 208 + g.nagpr, 208), LDS


def residual_epilogue(k, RES, F, VA, VL, dst_soff, st_soff, final, lbl):
    for i in range(16):
        k.e("v_lshlrev_b32 %s, 16, %s" % (vr(F), vr(RES + i)))
        k.e("v_and_b32 %s, 0xffff0000, %s" % (vr(F + 1), vr(RES + i)))
        k.e("v_pk_add_f32 %s, %s, %s" % (vr(2 * i, 2), vr(2 * i, 2), vr(F, 2)))
        k.e("v_cvt_pk_bf16_f32 %s, %s, %s" % (vr(RES + i), vr(2 * i), vr(2 * i + 1)))
    if final is not None:
        k.e("s_cmp_lg_u32 s%d, 0" % S_FLAG)
        k.e("s_cbranch_scc1 %s" % lbl)
    for i in range(4):
        k.vmop("buffer_store_dwordx4 %s, %s, %s, %s offen offset:%d" % (vr(RES + 4 * i, 4), vr(VA), sr(S_WS, 4), dst_soff, 1024 * i))
    k.e("v_and_b32 %s, 31, %s" % (vr(F + 4), vr(VL)))
    k.e("v_lshlrev_b32 %s, 3, %s" % (vr(F + 4), vr(F + 4)))
    stats_produce(k, RES, 0, F, F + 1, F + 2, F + 4, st_soff)
    k.e("s_endpgm")
    if final is not None:
        k.label(lbl)
        final()


def gen_k2(P):
    k = KB()
    NS, R = P.get("k2_ns", 4), P.get("k2_r", 8)
    HPS = 4
    STG = 16384
    NU = 8
    L_KV = NS * STG
    L_Z = L_KV + 65536
    LDS = L_Z + 2048
    NUM = [32, 48]
    DEN = [64, 80]
    OF = [96, 104]
    RES = 112
    VT, VL, VA, VDMA, VKV, VZ = 128, 129, 130, 131, 132, 133
    nwin = (NS + 3) // 4
    VRD = [[134 + 2 * w, 135 + 2 * w] for w in range(nwin)]
    RDEN = 140
    T = 144
    AW, AKV, APQ = 0, 32, 64
    nagpr = APQ + 8 * R
    k.e("s_cmp_ge_u32 s2, 256")
    k.e("s_cbranch_scc1 L_k2_end")
    load_kernargs(k)
    wave_id(k, VT, VL)
    tile_map(k, 0, 16, 16, 4, 8)
    k.e("s_lshl_b32 s%d, s%d, 2" % (S_MB, S_T0))
    k.e("s_add_u32 s%d, s%d, s%d" % (S_MB, S_MB, S_WAVE))
    lane_consts_128(k, VL, VRD, nwin, 4 * STG, VDMA, 2048, T, T + 1, T + 2)
    k.e("v_lshlrev_b32 %s, 4, %s" % (vr(VA), vr(VL)))
    k.e("v_add_u32 %s, 0x%x, %s" % (vr(VKV), L_KV, vr(VA)))
    k.e("v_lshrrev_b32 %s, 5, %s" % (vr(VZ), vr(VL)))
    k.e("v_lshlrev_b32 %s, 4, %s" % (vr(VZ), vr(VZ)))
    k.e("v_add_u32 %s, 0x%x, %s" % (vr(VZ), L_Z, vr(VZ)))
    k.e("s_waitcnt lgkmcnt(0)")
    make_srd(k, S_WS, P_WS, WS_SIZE)
    make_srd(k, S_W, P_WO, 1024 * 1024 * 2)
    k.e("s_lshl_b32 s%d, s%d, 7" % (S_T0, S_NB))
    k.e("s_lshl_b32 s%d, s%d, 16" % (S_T1, S_WAVE))
    k.e("s_add_u32 s%d, s%d, s%d" % (S_T0, S_T0, S_T1))
    srd_advance(k, S_W, "s%d" % S_T0)
    k.e("s_lshl_b32 s%d, s%d, 12" % (S_WL, S_WAVE))
    for i in range(4):
        k.e("s_mov_b32 s%d, %d" % (S_D + i, i * 8 * 2048))
    k.e("s_lshl_b32 s%d, s%d, 16" % (S_A, S_MB))
    k.e("v_lshrrev_b32 %s, 5, %s" % (vr(T), vr(VT)))
    k.e("v_mul_u32_u24 %s, %d, %s" % (vr(T), 17 * 256, vr(T)))
    k.e("v_bfe_u32 %s, %s, 4, 1" % (vr(T + 1), vr(VT)))
    k.e("v_lshl_add_u32 %s, %s, 11, %s" % (vr(T), vr(T + 1), vr(T)))
    k.e("v_and_b32 %s, 15, %s" % (vr(T + 1), vr(VT)))
    k.e("v_lshl_add_u32 %s, %s, 4, %s" % (vr(T), vr(T + 1), vr(T)))
    k.e("s_mov_b32 s%d, 0x%x" % (S_T0, WS_KV))
    for i in range(4):
        for r in range(8):
            k.vmop("buffer_load_dwordx4 %s, %s, %s, s%d offen offset:%d" % (
                vr(32 * i + 4 * r, 4), vr(T), sr(S_WS, 4), S_T0, 256 * r), ("kv", i))
        k.e("s_add_u32 s%d, s%d, %d" % (S_T0, S_T0, 8 * 17 * 256))
    k.e("v_and_b32 %s, 127, %s" % (vr(T + 2), vr(VT)))
    k.e("v_lshrrev_b32 %s, 2, %s" % (vr(T + 1), vr(T + 2)))
    k.e("v_mul_u32_u24 %s, %d, %s" % (vr(T + 1), 17 * 256, vr(T + 1)))
    k.e("v_bfe_u32 %s, %s, 1, 1" % (vr(T + 3), vr(T + 2)))
    k.e("v_lshl_add_u32 %s, %s, 6, %s" % (vr(T + 1), vr(T + 3), vr(T + 1)))
    k.e("v_and_b32 %s, 1, %s" % (vr(T + 3), vr(T + 2)))
    k.e("v_lshl_add_u32 %s, %s, 4, %s" % (vr(T + 1), vr(T + 3), vr(T + 1)))
    k.e("s_mov_b32 s%d, 0x%x" % (S_T0, WS_KV + 16 * 256))
    k.vmop("buffer_load_dwordx4 %s, %s, %s, s%d offen" % (vr(T + 8, 4), vr(T + 1), sr(S_WS, 4), S_T0), "z")
    k.vmop("buffer_load_dwordx4 %s, %s, %s, s%d offen offset:32" % (vr(T + 12, 4), vr(T + 1), sr(S_WS, 4), S_T0), "z")
    k.e("s_lshl_b32 s%d, s%d, 12" % (S_T1, S_NB))
    k.e("s_add_u32 s%d, s%d, s%d" % (S_FLAG, S_A, S_T1))
    k.e("s_add_u32 s%d, s%d, 0x%x" % (S_A, S_A, WS_PQ))

    def pq_load(h):
        if not 0 <= h < 32:
            return
        for f in range(2):
            k.vmop("buffer_load_dwordx4 %s, %s, %s, s%d offen offset:%d" % (
                ar(APQ + (h % R) * 8 + 4 * f, 4), vr(VA), sr(S_WS, 4), S_A, ((h % 2) * 2 + f) * 1024), ("PQ", h))
        if h % 2 == 1:
            k.e("s_add_u32 s%d, s%d, 4096" % (S_A, S_A))

    def dma(u, i, phase):
        if not 0 <= u < NU:
            return
        if phase == 0:
            k.e("s_add_u32 m0, s%d, 0x%x" % (S_WL, (u % NS) * STG + i * 1024))
        else:
            k.vmop("buffer_load_dwordx4 %s, %s, s%d offen lds" % (vr(VDMA), sr(S_W, 4), S_D + i), ("D", u, i))
            if i == 3:
                srd_advance(k, S_W, "0x%x" % (128 * 2048))

    def w_read(h, f, t):
        if not 0 <= h < 32:
            return
        u = h // HPS
        slot = u % NS
        for j in range(2):
            off = (slot % 4) * STG + (32 * (h % HPS) + 16 * f + 8 * j) * 128
            k.lgop("ds_read_b64_tr_b16 %s, %s offset:%d" % (
                ar(AW + (h % 2) * 16 + (2 * f + t) * 4 + 2 * j, 2), vr(VRD[slot // 4][t]), off), ("W", h, f, t))

    def kv_read(h, which, f):
        if not 0 <= h < 32:
            return
        if which == 0:
            k.lgop("ds_read_b128 %s, %s offset:%d" % (ar(AKV + (h % 2) * 16 + 4 * f, 4), vr(VKV), (2 * h + f) * 1024), ("KV", h, 0, f))
        else:
            k.lgop("ds_read_b128 %s, %s offset:%d" % (ar(AKV + (h % 2) * 16 + 8 + 4 * f, 4), vr(VZ), (2 * h + f) * 32), ("KV", h, 1, f))

    for u in range(NS - 2):
        for i in range(4):
            dma(u, i, 0)
            k.e("s_nop 0")
            dma(u, i, 1)
        for h in range(u * R // (NS - 2), (u + 1) * R // (NS - 2)):
            pq_load(h)
    k.e("v_lshlrev_b32 %s, 6, %s" % (vr(T), vr(VT)))
    k.e("v_add_u32 %s, 0x%x, %s" % (vr(T), L_KV, vr(T)))
    for i in range(4):
        k.need(vm=[("kv", i)])
        for c in range(4):
            o = T + 16 + 4 * (c % 2)
            for p in range(4):
                k.e("v_cvt_pk_bf16_f32 %s, %s, %s" % (vr(o + p), vr(32 * i + 8 * p + c), vr(32 * i + 8 * p + 4 + c)))
            k.lgop("ds_write_b128 %s, %s offset:%d" % (vr(T), vr(o, 4), 16384 * i + 16 * c))
            k.e("s_nop 0")
    k.need(vm=["z"])
    for p in range(4):
        k.e("v_cvt_pk_bf16_f32 %s, %s, %s" % (vr(T + 24 + p), vr(T + 8 + 2 * p), vr(T + 9 + 2 * p)))
    k.e("v_lshlrev_b32 %s, 4, %s" % (vr(T + 2), vr(T + 2)))
    k.e("v_add_u32 %s, 0x%x, %s" % (vr(T + 2), L_Z, vr(T + 2)))
    k.lgop("ds_write_b128 %s, %s" % (vr(T + 2), vr(T + 24, 4)))
    k.e("s_add_u32 s%d, s%d, 0x%x" % (S_T0, S_FLAG, WS_XT))
    for i in range(4):
        k.vmop("buffer_load_dwordx4 %s, %s, %s, s%d offen offset:%d" % (vr(RES + 4 * i, 4), vr(VA), sr(S_WS, 4), S_T0, 1024 * i), "res")
    for i in range(32):
        k.e("v_mov_b32 v%d, 0" % i)
    k.e("s_mov_b32 s%d, 0x%x" % (S_D + 6, EPS6))
    k.wait_all_lg()

    def s1(h, n):
        if not 0 <= h < 32:
            return False
        which = 1 if n < 2 else 0
        f = n % 2
        d = vr((DEN if which else NUM)[h % 2], 16)
        k.need(vm=[("PQ", h)], lg=[("KV", h, which, f)])
        k.e("v_mfma_f32_32x32x16_bf16 %s, %s, %s, %s" % (
            d, ar(AKV + (h % 2) * 16 + 8 * which + 4 * f, 4), ar(APQ + (h % R) * 8 + 4 * f, 4), d if f else "0"))
        return True

    def mainm(h, n):
        if not 0 <= h < 32:
            return False
        f, t = n // 2, n % 2
        k.need(lg=[("W", h, f, t)])
        a = vr(16 * t, 16)
        k.e("v_mfma_f32_32x32x16_bf16 %s, %s, %s, %s" % (
            a, ar(AW + (h % 2) * 16 + (2 * f + t) * 4, 4), vr(OF[h % 2] + 4 * f, 4), a))
        return True

    def post(h):
        if not 0 <= h < 32:
            return []
        o = []
        rd = RDEN + 2 * (h % 2)
        o.append("v_add_f32 %s, s%d, %s" % (vr(rd), S_D + 6, vr(DEN[h % 2])))
        o.append("v_rcp_f32 %s, %s" % (vr(rd), vr(rd)))
        o.append("s_nop 0")
        n = NUM[h % 2]
        for r in range(0, 16, 2):
            o.append("v_mul_f32 %s, %s, %s" % (vr(n + r), vr(n + r), vr(rd)))
            o.append("v_mul_f32 %s, %s, %s" % (vr(n + r + 1), vr(n + r + 1), vr(rd)))
            o.append("v_cvt_pk_bf16_f32 %s, %s, %s" % (vr(OF[h % 2] + r // 2), vr(n + r), vr(n + r + 1)))
        return o

    pend = []
    for i in range(-2, 32):
        if (i + 1) % HPS == 0 or i == -2:
            u = (i + 1) // HPS if i != -2 else None
            if i == -2:
                k.e("s_barrier")
            elif 0 <= u < NU:
                k.need(vm=[("D", u, j) for j in range(4)])
                k.e("s_barrier")
        ub = (i + 1) // HPS
        pos = (i + 1) % HPS
        ud = ub + NS - 2 if i >= -1 else -1
        for n in range(4):
            if n == 1:
                dma(ud, pos, 0)
            did = s1(i + 1, n)
            if n == 1:
                if not did:
                    k.e("s_nop 0")
                dma(ud, pos, 1)
            take = 6 if n < 3 else len(pend)
            for ins in pend[:take]:
                k.e(ins)
            pend = pend[take:]
            kv_read(i + 2, 1 if n < 2 else 0, n % 2)
        k.e("s_nop 1")
        pend = post(i + 1)
        for n in range(4):
            did = mainm(i, n)
            w_read(i + 1, n // 2, n % 2)
            if n == 0 and i >= -1:
                pq_load(i + 1 + R)
            if n >= 2:
                if not did:
                    k.e("s_nop 15")
                    k.e("s_nop 15")
                take = 3 if n == 2 else 6
                for ins in pend[:take]:
                    k.e(ins)
                pend = pend[take:]
    assert not pend
    k.c("epilogue")
    k.need(vm=["res"])
    k.e("s_nop 15")
    k.e("s_add_u32 s%d, s%d, 0x%x" % (S_T0, S_FLAG, WS_X1))
    k.e("s_lshl_b32 s%d, s%d, 12" % (S_T1, S_MB))
    k.e("s_lshl_b32 s%d, s%d, 8" % (S_T2, S_NB))
    k.e("s_add_u32 s%d, s%d, s%d" % (S_T1, S_T1, S_T2))
    k.e("s_add_u32 s%d, s%d, 0x%x" % (S_T1, S_T1, WS_STB))
    residual_epilogue(k, RES, T, VA, VL, "s%d" % S_T0, "s%d" % S_T1, None, None)
    k.label("L_k2_end")
    k.e("s_endpgm")
    return header("k2_kernel") + "\n".join(k.lines) + "\n" + descriptor("k2_kernel", 176 + nagpr, 176), LDS


def gen_k3(P):
    k = KB()
    NS, WD, R = P.get("k3_ns", 4), P.get("k3_wd", 1), P.get("k3_r", 16)
    GREG = 64 * 224
    UOFF = GREG + 128
    STG = 28928
    L_CS = NS * STG
    LDS = L_CS + 1024
    VT, VL = 224, 225
    VA = [226, 227]
    nwin = (NS + 1) // 2
    VRD = [228 + w for w in range(nwin)]
    VD = [232 + i for i in range(7)]
    VST = [240, 242]
    T = 244
    k.e("s_cmp_ge_u32 s2, 256")
    k.e("s_cbranch_scc1 L_k3_end")
    load_kernargs(k)
    wave_id(k, VT, VL)
    tile_map(k, 0, 8, 32, 4, 8)
    k.e("s_lshl_b32 s%d, s%d, 3" % (S_MB, S_T0))
    k.e("s_lshl_b32 s%d, s%d, 1" % (S_T1, S_WAVE))
    k.e("s_add_u32 s%d, s%d, s%d" % (S_MB, S_MB, S_T1))
    L = vr(VL)
    k.e("v_bfe_u32 %s, %s, 2, 2" % (vr(T), L))
    k.e("v_lshrrev_b32 %s, 5, %s" % (vr(T + 1), L))
    k.e("v_lshl_add_u32 %s, %s, 2, %s" % (vr(T), vr(T + 1), vr(T)))
    k.e("v_mul_u32_u24 %s, 224, %s" % (vr(T), vr(T)))
    k.e("v_and_b32 %s, 3, %s" % (vr(T + 1), L))
    k.e("v_lshl_add_u32 %s, %s, 3, %s" % (vr(T), vr(T + 1), vr(T)))
    k.e("v_bfe_u32 %s, %s, 4, 1" % (vr(T + 1), L))
    k.e("v_mul_u32_u24 %s, %d, %s" % (vr(T + 1), UOFF, vr(T + 1)))
    for w in range(nwin):
        k.e("v_add_u32 %s, %s, %s" % (vr(VRD[w]), vr(T), vr(T + 1)))
        if w:
            k.e("v_add_u32 %s, 0x%x, %s" % (vr(VRD[w]), w * 2 * STG, vr(VRD[w])))
    k.e("s_mov_b32 s%d, 7168" % S_T3)
    for i in range(7):
        k.e("v_add_u32 %s, %d, %s" % (vr(T), 64 * i, L))
        k.e("v_mul_u32_u24 %s, 4682, %s" % (vr(T + 1), vr(T)))
        k.e("v_lshrrev_b32 %s, 16, %s" % (vr(T + 1), vr(T + 1)))
        k.e("v_mul_u32_u24 %s, 14, %s" % (vr(T + 2), vr(T + 1)))
        k.e("v_sub_u32 %s, %s, %s" % (vr(T + 2), vr(T), vr(T + 2)))
        k.e("v_mul_lo_u32 %s, %s, s%d" % (vr(T + 1), vr(T + 1), S_T3))
        k.e("v_lshl_add_u32 %s, %s, 4, %s" % (vr(VD[i]), vr(T + 2), vr(T + 1)))
    assert all((c * 4682) >> 16 == c // 14 for c in range(448))
    k.e("v_lshlrev_b32 %s, 4, %s" % (vr(VA[0]), L))
    k.e("v_add_u32 %s, 0x10000, %s" % (vr(VA[1]), vr(VA[0])))
    k.e("s_waitcnt lgkmcnt(0)")
    make_srd(k, S_WS, P_WS, WS_SIZE)
    k.e("s_cmp_lt_u32 s%d, 2" % S_WAVE)
    k.e("s_cselect_b32 s%d, s%d, s%d" % (S_T0, P_WG, P_WU))
    k.e("s_cselect_b32 s%d, s%d, s%d" % (S_T1, P_WG + 1, P_WU + 1))
    k.e("s_cselect_b32 s%d, 0, %d" % (S_WL, UOFF))
    make_srd(k, S_W, S_T0, 1024 * 3584 * 2)
    k.e("s_and_b32 s%d, s%d, 1" % (S_T2, S_WAVE))
    k.e("s_mul_i32 s%d, s%d, %d" % (S_T0, S_T2, 32 * 7168))
    k.e("s_mul_i32 s%d, s%d, 224" % (S_T1, S_NB))
    k.e("s_add_u32 s%d, s%d, s%d" % (S_T0, S_T0, S_T1))
    srd_advance(k, S_W, "s%d" % S_T0)
    k.e("s_mul_i32 s%d, s%d, %d" % (S_T2, S_T2, 32 * 224))
    k.e("s_add_u32 s%d, s%d, s%d" % (S_WL, S_WL, S_T2))
    k.e("s_lshl_b32 s%d, s%d, 16" % (S_A, S_MB))
    k.e("s_add_u32 s%d, s%d, 0x%x" % (S_A, S_A, WS_X1))
    k.e("v_and_b32 %s, 31, %s" % (vr(T), L))
    k.e("v_lshlrev_b32 %s, 3, %s" % (vr(T), vr(T)))
    k.e("v_lshrrev_b32 %s, 5, %s" % (vr(T + 1), L))
    k.e("v_lshl_add_u32 %s, %s, 11, %s" % (vr(T), vr(T + 1), vr(T)))
    k.e("s_lshl_b32 s%d, s%d, 12" % (S_T0, S_MB))
    k.e("s_add_u32 s%d, s%d, 0x%x" % (S_T0, S_T0, WS_STB))
    stats_load(k, 0, T, "s%d" % S_T0, "st")
    k.e("s_add_u32 s%d, s%d, 4096" % (S_T0, S_T0))
    stats_load(k, 16, T, "s%d" % S_T0, "st")
    k.e("v_min_u32 %s, 223, %s" % (vr(T + 2), vr(VT)))
    k.e("v_lshrrev_b32 %s, 5, %s" % (vr(T + 3), vr(T + 2)))
    k.e("v_lshlrev_b32 %s, 4, %s" % (vr(T + 3), vr(T + 3)))
    k.e("v_and_b32 %s, 15, %s" % (vr(T + 4), vr(T + 2)))
    k.e("v_add_u32 %s, %s, %s" % (vr(T + 3), vr(T + 3), vr(T + 4)))
    k.e("v_bfe_u32 %s, %s, 4, 1" % (vr(T + 4), vr(T + 2)))
    k.e("v_mul_u32_u24 %s, 3584, %s" % (vr(T + 4), vr(T + 4)))
    k.e("v_add_lshl_u32 %s, %s, %s, 2" % (vr(T + 3), vr(T + 3), vr(T + 4)))
    k.e("s_mul_i32 s%d, s%d, %d" % (S_T0, S_NB, 112 * 4))
    k.e("s_add_u32 s%d, s%d, 0x%x" % (S_T0, S_T0, WS_CS + 3072 * 4))
    for i in range(4):
        k.vmop("buffer_load_dword %s, %s, %s, s%d offen" % (vr(32 + i), vr(T + 3), sr(S_WS, 4), S_T0), "cs")
        if i < 3:
            k.e("s_add_u32 s%d, s%d, %d" % (S_T0, S_T0, NCS * 4))

    def mid():
        k.need(vm=["st", "cs"])
        for mt in range(2):
            stats_finish(k, 16 * mt, VST[mt], VST[mt] + 1, T + 4, T + 5)
            k.e("v_sub_f32 %s, 0, %s" % (vr(VST[mt]), vr(VST[mt])))
            k.e("v_mul_f32 %s, %s, %s" % (vr(VST[mt] + 1), vr(VST[mt] + 1), vr(VST[mt] + 1)))
        k.e("v_add_f32 v32, v32, v33")
        k.e("v_add_f32 v34, v34, v35")
        k.e("v_add_f32 v32, v32, v34")
        k.e("v_lshlrev_b32 %s, 2, %s" % (vr(T + 2), vr(T + 2)))
        k.e("v_add_u32 %s, 0x%x, %s" % (vr(T + 2), L_CS, vr(T + 2)))
        k.e("ds_write_b32 %s, v32" % vr(T + 2))
        k.e("s_waitcnt lgkmcnt(0)")
        for i in range(224):
            k.e("v_mov_b32 v%d, 0" % i)
        k.e("s_cmp_ge_u32 s2, 34")
        k.e("s_cbranch_scc1 L_k3_nz")
        k.e("s_lshl_b32 s%d, s2, 12" % S_T3)
        k.e("s_add_u32 s%d, s%d, 0x%x" % (S_T3, S_T3, WS_KV))
        k.e("v_lshlrev_b32 %s, 4, %s" % (vr(T), vr(VT)))
        k.e("buffer_store_dwordx4 v[0:3], %s, %s, s%d offen" % (vr(T), sr(S_WS, 4), S_T3))
        k.e("s_waitcnt vmcnt(0)")
        k.label("L_k3_nz")

    def rd_addr(slot, q, t, j):
        return VRD[slot // 2], (slot % 2) * STG + (16 * q + 8 * j) * 224 + t * 32

    def dma(u, i, phase):
        if phase == 0:
            k.e("s_add_u32 m0, s%d, 0x%x" % (S_WL, (u % NS) * STG + i * 1024))
        else:
            k.vmop("buffer_load_dwordx4 %s, %s, 0 offen lds" % (vr(VD[i]), sr(S_W, 4)), ("D", u, i))

    g = Gemm(k, 2, 7, 64, 4, NS, WD, R, 7, 64 * 7168, lambda t: "T", rd_addr, dma, VA, "L_k3_loop")
    g.run(mid)

    k.c("epilogue")
    k.e("v_lshrrev_b32 %s, 5, %s" % (vr(VT), L))
    k.e("v_lshlrev_b32 %s, 4, %s" % (vr(VT), vr(VT)))
    k.e("v_add_u32 %s, 0x%x, %s" % (vr(VT), L_CS, vr(VT)))
    CSB = [[228, 232, 244, 248], [8, 12, 236, 252]]

    def cs_read(t, js):
        if t < 7:
            for j in js:
                k.lgop("ds_read_b128 %s, %s offset:%d" % (vr(CSB[t % 2][j], 4), vr(VT), t * 128 + j * 32), ("cs", t))

    cs_read(0, range(4))
    cs_read(1, (2, 3))
    k.e("s_mul_i32 s%d, s%d, %d" % (S_T0, S_MB, 224 * 1024))
    k.e("s_mul_i32 s%d, s%d, %d" % (S_T1, S_NB, 7 * 1024))
    k.e("s_add_u32 s%d, s%d, s%d" % (S_T0, S_T0, S_T1))
    k.e("s_add_u32 s%d, s%d, 0x%x" % (S_T0, S_T0, WS_H))
    k.e("s_add_u32 s%d, s%d, %d" % (S_T1, S_T0, 224 * 1024))
    k.e("s_add_u32 s%d, s%d, 4096" % (S_T2, S_T0))
    k.e("s_add_u32 s%d, s%d, 4096" % (S_T3, S_T1))
    k.e("s_nop 7")
    for t in range(7):
        cb = CSB[t % 2]
        k.need(lg=[("cs", t)])
        for mt in range(2):
            a = (mt * 7 + t) * 16
            st = vr(VST[mt], 2)
            for r in range(0, 8, 2):
                cg = cb[r // 4] + r % 4
                cu = cb[2 + r // 4] + r % 4
                k.e("v_pk_fma_f32 %s, %s, %s, %s op_sel_hi:[1,0,1]" % (vr(a + r, 2), vr(cg, 2), st, vr(a + r, 2)))
                k.e("v_pk_fma_f32 %s, %s, %s, %s op_sel_hi:[1,0,1]" % (vr(a + 8 + r, 2), vr(cu, 2), st, vr(a + 8 + r, 2)))
                k.e("v_pk_mul_f32 %s, %s, %s" % (vr(a + r, 2), vr(a + r, 2), vr(a + 8 + r, 2)))
                k.e("v_pk_mul_f32 %s, %s, %s op_sel:[0,1] op_sel_hi:[1,1]" % (vr(a + r, 2), vr(a + r, 2), st))
                k.e("v_cvt_pk_bf16_f32 %s, %s, %s" % (vr(a + r // 2), vr(a + r), vr(a + r + 1)))
            so = [[S_T0, S_T2], [S_T1, S_T3]][mt][t // 4]
            k.vmop("buffer_store_dwordx4 %s, %s, %s, s%d offen offset:%d" % (vr(a, 4), vr(VA[0]), sr(S_WS, 4), so, (t % 4) * 1024))
            if t == 0 and mt == 0:
                cs_read(1, (0, 1))
        cs_read(t + 2, range(4))
    k.label("L_k3_end")
    k.e("s_endpgm")
    return header("k3_kernel") + "\n".join(k.lines) + "\n" + descriptor("k3_kernel", 256 + g.nagpr, 256), LDS


def gen_k4(P):
    k = KB()
    NS, WD, R = P.get("k4_ns", 7), P.get("k4_wd", 4), P.get("k4_r", 28)
    STG = 16384
    LDS = NS * STG
    RES = 32
    VT, VL, VA, VDMA = 48, 49, 50, 51
    nwin = (NS + 3) // 4
    VRD = [[52 + 2 * w, 53 + 2 * w] for w in range(nwin)]
    T = 60
    k.label("L_k4_body")
    k.e("s_cmp_ge_u32 s2, 256")
    k.e("s_cbranch_scc1 L_k4_end")
    load_kernargs(k)
    wave_id(k, VT, VL)
    tile_map(k, 0, 16, 16, 4, 8)
    k.e("s_lshl_b32 s%d, s%d, 2" % (S_MB, S_T0))
    k.e("s_add_u32 s%d, s%d, s%d" % (S_MB, S_MB, S_WAVE))
    lane_consts_128(k, VL, VRD, nwin, 4 * STG, VDMA, 2048, T, T + 1, T + 2)
    k.e("v_lshlrev_b32 %s, 4, %s" % (vr(VA), vr(VL)))
    k.e("s_waitcnt lgkmcnt(0)")
    make_srd(k, S_WS, P_WS, WS_SIZE)
    make_srd(k, S_W, P_WD, 3584 * 1024 * 2)
    make_srd(k, S_O, P_OUT, 2048 * 1024 * 2)
    k.e("s_lshl_b32 s%d, s%d, 7" % (S_T0, S_NB))
    k.e("s_lshl_b32 s%d, s%d, 16" % (S_T1, S_WAVE))
    k.e("s_add_u32 s%d, s%d, s%d" % (S_T0, S_T0, S_T1))
    srd_advance(k, S_W, "s%d" % S_T0)
    k.e("s_lshl_b32 s%d, s%d, 12" % (S_WL, S_WAVE))
    for i in range(4):
        k.e("s_mov_b32 s%d, %d" % (S_D + i, i * 8 * 2048))
    k.e("s_mul_i32 s%d, s%d, %d" % (S_A, S_MB, 224 * 1024))
    k.e("s_add_u32 s%d, s%d, 0x%x" % (S_A, S_A, WS_H))
    k.e("s_lshl_b32 s%d, s%d, 16" % (S_D + 4, S_MB))
    k.e("s_lshl_b32 s%d, s%d, 12" % (S_T1, S_NB))
    k.e("s_add_u32 s%d, s%d, s%d" % (S_D + 4, S_D + 4, S_T1))
    k.e("s_add_u32 s%d, s%d, 0x%x" % (S_T0, S_D + 4, WS_X1))
    for i in range(4):
        k.vmop("buffer_load_dwordx4 %s, %s, %s, s%d offen offset:%d" % (vr(RES + 4 * i, 4), vr(VA), sr(S_WS, 4), S_T0, 1024 * i), "res")

    def mid():
        for i in range(32):
            k.e("v_mov_b32 v%d, 0" % i)

    def rd_addr(slot, q, t, j):
        return VRD[slot // 4][t], (slot % 4) * STG + (16 * q + 8 * j) * 128

    def dma(u, i, phase):
        if phase == 0:
            k.e("s_add_u32 m0, s%d, 0x%x" % (S_WL, (u % NS) * STG + i * 1024))
        else:
            k.vmop("buffer_load_dwordx4 %s, %s, s%d offen lds" % (vr(VDMA), sr(S_W, 4), S_D + i), ("D", u, i))

    g = Gemm(k, 1, 2, 224, 8, NS, WD, R, 4, 128 * 2048, lambda t: "T", rd_addr, dma, [VA], "L_k4_loop")
    g.run(mid)
    k.c("epilogue")
    k.need(vm=["res"])
    k.e("s_add_u32 s%d, s%d, 0x%x" % (S_T0, S_D + 4, WS_XT))
    k.e("s_lshl_b32 s%d, s%d, 12" % (S_T1, S_MB))
    k.e("s_lshl_b32 s%d, s%d, 8" % (S_T2, S_NB))
    k.e("s_add_u32 s%d, s%d, s%d" % (S_T1, S_T1, S_T2))
    k.e("s_add_u32 s%d, s%d, 0x%x" % (S_T1, S_T1, WS_STA))
    k.e("s_nop 15")

    def final():
        k.e("v_and_b32 %s, 31, %s" % (vr(T), vr(VL)))
        k.e("v_lshlrev_b32 %s, 11, %s" % (vr(T), vr(T)))
        k.e("v_lshrrev_b32 %s, 5, %s" % (vr(T + 1), vr(VL)))
        k.e("v_lshl_add_u32 %s, %s, 4, %s" % (vr(T), vr(T + 1), vr(T)))
        k.e("s_lshl_b32 s%d, s%d, 16" % (S_T0, S_MB))
        k.e("s_lshl_b32 s%d, s%d, 7" % (S_T1, S_NB))
        k.e("s_add_u32 s%d, s%d, s%d" % (S_T0, S_T0, S_T1))
        for i in range(4):
            b = RES + 4 * i
            k.e("v_permlane32_swap_b32 v%d, v%d" % (b, b + 2))
            k.e("v_permlane32_swap_b32 v%d, v%d" % (b + 1, b + 3))
        k.e("s_nop 1")
        for i in range(4):
            k.vmop("buffer_store_dwordx4 %s, %s, %s, s%d offen offset:%d" % (vr(RES + 4 * i, 4), vr(T), sr(S_O, 4), S_T0, 32 * i))

    residual_epilogue(k, RES, T, VA, VL, "s%d" % S_T0, "s%d" % S_T1, final, "L_k4_final")
    k.label("L_k4_end")
    k.e("s_endpgm")
    nv = 72 + g.nagpr
    txt = header("k4b_kernel") + "    s_mov_b32 s%d, 1\n    s_branch L_k4_body\n" % S_FLAG
    txt += header("k4a_kernel") + "    s_mov_b32 s%d, 0\n    s_nop 0\n" % S_FLAG + "\n".join(k.lines) + "\n"
    txt += descriptor("k4a_kernel", nv, 72) + descriptor("k4b_kernel", nv, 72)
    return txt, LDS


HEAD = """; Kernarg layout for this problem (80 bytes, ptrs only, base s[0:1]):
;   offset  56: d_out     shape=(1, 2048, 1024) dtype=bfloat16 (2 bytes/elem)
; Generated by a hand-written generator script (k0 prep, k1 qkv, k2 attn-out, k3 gate/up, k4 down).
"""


def build(P):
    t0, l0 = gen_k0()
    t1, l1 = gen_k1(P)
    t2, l2 = gen_k2(P)
    t3, l3 = gen_k3(P)
    t4, l4 = gen_k4(P)
    L = [("k0_kernel", K0_GRID, l0), ("k1_kernel", 256, l1), ("k2_kernel", 256, l2), ("k3_kernel", 256, l3),
         ("k4a_kernel", 256, l4), ("k1_kernel", 256, l1), ("k2_kernel", 256, l2), ("k3_kernel", 256, l3),
         ("k4b_kernel", 256, l4)]
    out = HEAD
    for n, g, l in L:
        out += "; @launch kernel=%s grid=(%d,1,1) block=(256,1,1) lds=%d\n" % (n, g, l)
    out += '.amdgcn_target "amdgcn-amd-amdhsa--gfx950"\n.text\n'
    out += t0 + t1 + t2 + t3 + t4
    return out


def main():
    P = {}
    outp = "cdna_kernels/%s.s" % NAME
    for a in sys.argv[1:]:
        if "=" in a:
            kk, v = a.split("=")
            if kk == "out":
                outp = v
            else:
                P[kk] = int(v)
    open(outp, "w").write(build(P))


if __name__ == "__main__":
    main()
```
